```python
import torch

def _softmax(x, axis=-1):
    return torch.softmax(x, dim=axis)
def _gelu(x):
    return torch.nn.functional.gelu(x, approximate="tanh")
def _silu(x):
    return torch.nn.functional.silu(x)
def _sigmoid(x):
    return torch.sigmoid(x)
def _layernorm(x, axis=-1, eps=1e-5):
    m = x.mean(dim=axis, keepdim=True)
    v = x.var(dim=axis, keepdim=True, unbiased=False)
    return (x - m) / torch.sqrt(v + eps)
def _scatter_add(tgt, idx, src, axis=0):
    return tgt.clone().index_add_(axis, idx, src)
def _segment_sum(src, seg, n):
    out = torch.zeros((n,) + src.shape[1:], dtype=src.dtype)
    return out.index_add_(0, seg, src)
def _pad(x, pw):
    flat = tuple(v for pair in reversed(pw) for v in pair)
    return torch.nn.functional.pad(x, flat)

kernel_name = 'concat_heads__gqa_block_cached__gqa_block_cached__near_ridge'

def setup_inputs():

    _w = (lambda a: (lambda t: t.to(torch.bfloat16) if t.is_floating_point() else t)(torch.as_tensor(a)))
    def _A_setup():
        B, Sq, D = 16, 112, 576
        Hq, Hkv, Sk, Dh = 32, 16, 512, 128
        assert Hq % Hkv == 0, (Hq, Hkv)
        return {
            "x": _w((lambda *s: torch.randn(*s, dtype=torch.bfloat16) * 0.8)(B, Sq, D)),
            "k_cache": _w((lambda *s: torch.randn(*s, dtype=torch.bfloat16) * 0.8)(B, Hkv, Sk, Dh)),
            "v_cache": _w((lambda *s: torch.randn(*s, dtype=torch.bfloat16) * 0.05)(B, Hkv, Sk, Dh)),
            "wq": _w((lambda *s: torch.randn(*s, dtype=torch.bfloat16) * 0.8)(D, Hq * Dh) * (D ** -0.5)),
            "wo": _w((lambda *s: torch.randn(*s, dtype=torch.bfloat16) * 0.05)(Hq * Dh, D) * ((Hq * Dh) ** -0.5)),
        }
    _A_in = _A_setup()

    def _B_setup():
        B, Sq, D = 16, 112, 576
        Hq, Hkv, Sk, Dh = 32, 16, 512, 128
        assert Hq % Hkv == 0, (Hq, Hkv)
        return {
            "x": _w((lambda *s: torch.randn(*s, dtype=torch.bfloat16) * 0.8)(B, Sq, D)),
            "k_cache": _w((lambda *s: torch.randn(*s, dtype=torch.bfloat16) * 0.8)(B, Hkv, Sk, Dh)),
            "v_cache": _w((lambda *s: torch.randn(*s, dtype=torch.bfloat16) * 0.05)(B, Hkv, Sk, Dh)),
            "wq": _w((lambda *s: torch.randn(*s, dtype=torch.bfloat16) * 0.8)(D, Hq * Dh) * (D ** -0.5)),
            "wo": _w((lambda *s: torch.randn(*s, dtype=torch.bfloat16) * 0.05)(Hq * Dh, D) * ((Hq * Dh) ** -0.5)),
        }
    _B_in = _B_setup()

    return {
        "A_x": _A_in["x"],
        "A_k_cache": _A_in["k_cache"],
        "A_v_cache": _A_in["v_cache"],
        "A_wq": _A_in["wq"],
        "A_wo": _A_in["wo"],
        "B_x": _B_in["x"],
        "B_k_cache": _B_in["k_cache"],
        "B_v_cache": _B_in["v_cache"],
        "B_wq": _B_in["wq"],
        "B_wo": _B_in["wo"],
    }

def reference(A_x, A_k_cache, A_v_cache, A_wq, A_wo, B_x, B_k_cache, B_v_cache, B_wq, B_wo):
    def _A_ref(x, k_cache, v_cache, wq, wo):
        B, Sq, D = x.shape
        Hq, Dh = 32, 128
        Hkv = k_cache.shape[1]
        rep = Hq // Hkv
        q = (lambda x, *d: x.permute(*d))((x @ wq).reshape(B, Sq, Hq, Dh), 0, 2, 1, 3)
        k = (lambda x, n, axis: torch.repeat_interleave(x, n, dim=axis))(k_cache, rep, axis=1)
        v = (lambda x, n, axis: torch.repeat_interleave(x, n, dim=axis))(v_cache, rep, axis=1)
        scores = torch.einsum("bhqd,bhkd->bhqk", q, k) * (Dh ** -0.5)
        p = _softmax(scores, axis=-1)
        o = torch.einsum("bhqk,bhkd->bhqd", p, v)
        return (lambda x, *d: x.permute(*d))(o, 0, 2, 1, 3).reshape(B, Sq, Hq * Dh) @ wo

    def _B_ref(x, k_cache, v_cache, wq, wo):
        B, Sq, D = x.shape
        Hq, Dh = 32, 128
        Hkv = k_cache.shape[1]
        rep = Hq // Hkv
        q = (lambda x, *d: x.permute(*d))((x @ wq).reshape(B, Sq, Hq, Dh), 0, 2, 1, 3)
        k = (lambda x, n, axis: torch.repeat_interleave(x, n, dim=axis))(k_cache, rep, axis=1)
        v = (lambda x, n, axis: torch.repeat_interleave(x, n, dim=axis))(v_cache, rep, axis=1)
        scores = torch.einsum("bhqd,bhkd->bhqk", q, k) * (Dh ** -0.5)
        p = _softmax(scores, axis=-1)
        o = torch.einsum("bhqk,bhkd->bhqd", p, v)
        return (lambda x, *d: x.permute(*d))(o, 0, 2, 1, 3).reshape(B, Sq, Hq * Dh) @ wo

    a = _A_ref(A_x, A_k_cache, A_v_cache, A_wq, A_wo)
    b = _B_ref(B_x, B_k_cache, B_v_cache, B_wq, B_wo)
    return torch.concatenate([a, b], axis=-1)
```

```python
import re

_VR = re.compile(r'^v(\d+)$'); _VRR = re.compile(r'^v\[(\d+):(\d+)\]$')
_SR = re.compile(r'^s(\d+)$'); _SRR = re.compile(r'^s\[(\d+):(\d+)\]$')
TRANS = ('v_exp_f32', 'v_log_f32', 'v_rcp_f32', 'v_rsq_f32', 'v_sqrt_f32', 'v_sin_f32', 'v_cos_f32')

def vset(op):
    op = op.strip()
    if op.startswith('-'): op = op[1:]
    if op.startswith('abs(') or op.startswith('|'):
        op = op.replace('abs(', '').replace(')', '').replace('|', '')
    m = _VR.match(op)
    if m: return {int(m.group(1))}
    m = _VRR.match(op)
    if m: return set(range(int(m.group(1)), int(m.group(2)) + 1))
    return set()
def sset(op):
    op = op.strip()
    if op == 'vcc': return {'vcc'}
    if op == 'm0': return {'m0'}
    if op == 'exec': return {'exec'}
    m = _SR.match(op)
    if m: return {int(m.group(1))}
    m = _SRR.match(op)
    if m: return set(range(int(m.group(1)), int(m.group(2)) + 1))
    return set()

class I:
    __slots__ = ('text', 'op', 'kind', 'vr', 'vw', 'sr', 'sw', 'A', 'B', 'C', 'D', 'passes', 'ws', 'store4', 'lds_dma')
    def __init__(self, text):
        self.text = text
        t = text.split(';')[0].strip()
        parts = t.split(None, 1)
        self.op = op = parts[0]
        rest = parts[1] if len(parts) > 1 else ''
        ops = [o.strip() for o in rest.split(',')] if rest else []
        mods = ''
        if ops:
            lp = ops[-1].split(None, 1)
            ops[-1] = lp[0]
            mods = lp[1] if len(lp) > 1 else ''
        self.vr = set(); self.vw = set(); self.sr = set(); self.sw = set()
        self.A = self.B = self.C = self.D = set(); self.passes = 0; self.ws = 1; self.store4 = set(); self.lds_dma = False
        if op.startswith('v_mfma'):
            self.kind = 'mfma'
            self.D = vset(ops[0]); self.A = vset(ops[1]); self.B = vset(ops[2]); self.C = vset(ops[3])
            self.vw = set(self.D); self.vr = self.A | self.B | self.C
            self.passes = 8 if '32x32x16' in op else 4
        elif op.startswith('v_cmp'):
            self.kind = 'valu'; self.sw = sset(ops[0])
            for o in ops[1:]: self.vr |= vset(o); self.sr |= sset(o)
        elif op.startswith('v_readfirstlane') or op.startswith('v_readlane'):
            self.kind = 'rdlane'; self.sw = sset(ops[0]); self.vr = vset(ops[1])
        elif op.startswith('v_permlane'):
            self.kind = 'perm'; self.vr = vset(ops[0]) | vset(ops[1]); self.vw = set(self.vr)
        elif op.startswith('v_'):
            self.kind = 'trans' if op.replace('_e32', '').replace('_e64', '') in TRANS else 'valu'
            self.vw = vset(ops[0])
            k = 1
            if '_co_' in op:
                self.sw = sset(ops[1]); k = 2
            for o in ops[k:]: self.vr |= vset(o); self.sr |= sset(o)
            if op.startswith('v_fmac') or op.startswith('v_fmaak') : self.vr |= self.vw
            if op.startswith('v_cndmask') and len(ops) == 3: self.sr |= {'vcc'}
        elif op.startswith('ds_read') :
            self.kind = 'ds'; self.vw = vset(ops[0]); self.vr = vset(ops[1])
        elif op.startswith('ds_write') or op.startswith('ds_add'):
            self.kind = 'ds'
            for o in ops: self.vr |= vset(o)
        elif op.startswith('ds_'):
            self.kind = 'ds'; self.vw = vset(ops[0])
            for o in ops[1:]: self.vr |= vset(o)
        elif op.startswith('buffer_load') or op.startswith('global_load'):
            self.kind = 'vmem'
            if ' lds' in (' ' + mods) or '_lds_' in op:
                self.lds_dma = True
                for o in ops: self.vr |= vset(o); self.sr |= sset(o)
            else:
                self.vw = vset(ops[0])
                for o in ops[1:]: self.vr |= vset(o); self.sr |= sset(o)
        elif op.startswith('buffer_store') or op.startswith('global_store') or op.startswith('buffer_atomic') or op.startswith('global_atomic'):
            self.kind = 'vmem'
            for o in ops: self.vr |= vset(o); self.sr |= sset(o)
            if 'x4' in op or 'x3' in op:
                self.store4 = vset(ops[0]) if op.startswith('buffer') else vset(ops[1])
        elif op.startswith('buffer_'):
            self.kind = 'vmem'
        elif op == 's_nop':
            self.kind = 'nop'; self.ws = int(ops[0], 0) + 1
        elif op.startswith('s_'):
            self.kind = 'salu'
            if ops and not op.startswith('s_cmp') and not op.startswith('s_cbranch') and not op.startswith('s_branch') \
               and not op.startswith('s_waitcnt') and not op.startswith('s_barrier') and not op.startswith('s_setprio') and not op.startswith('s_bitcmp') and not op.startswith('s_sleep'):
                self.sw = sset(ops[0])
                for o in ops[1:]: self.sr |= sset(o)
            else:
                for o in ops: self.sr |= sset(o)
        else:
            raise ValueError('unknown op ' + text)

def need(p, c):
    n = 0
    pv = p.kind in ('valu', 'trans', 'perm')
    cv = c.kind in ('valu', 'trans', 'perm', 'rdlane')
    if pv and c.kind == 'mfma' and (p.vw & c.vr): n = max(n, 2)
    if p.kind == 'mfma':
        P = p.passes
        if c.kind == 'mfma':
            if p.D & (c.A | c.B): n = max(n, P + 4)
            if p.D & c.C:
                if not (p.D == c.C and p.passes == c.passes): n = max(n, P + 2)
            if (p.D & c.D) and not (p.D == c.D and c.C == c.D): n = max(n, P + 4)
        else:
            if p.D & (c.vr | c.vw): n = max(n, P + 4)
            if cv and (p.C & c.vw): n = max(n, P - 1)
            if c.kind in ('ds', 'vmem') and (p.C & c.vw): n = max(n, P - 1)
    if p.kind == 'trans' and c.kind in ('valu', 'perm', 'rdlane') and (p.vw & c.vr): n = max(n, 1)
    if pv and c.kind == 'perm' and (p.vw & c.vr): n = max(n, 2)
    if pv and c.kind == 'rdlane' and (p.vw & c.vr): n = max(n, 1)
    if p.kind in ('valu', 'rdlane') and p.sw:
        if cv and (p.sw & c.sr): n = max(n, 2)
        if c.kind == 'vmem' and (p.sw & c.sr): n = max(n, 5)
        if c.kind == 'salu' and (p.sw & c.sr): n = max(n, 1)
    if p.kind == 'salu' and 'm0' in p.sw and c.lds_dma: n = max(n, 1)
    if p.store4 and cv and (p.store4 & c.vw): n = max(n, 2)
    if p.store4 and c.kind in ('ds', 'vmem', 'mfma') and (p.store4 & c.vw): n = max(n, 1)
    return n

class Asm:
    def __init__(self):
        self.out = []
        self.ctx = [[]]
        self.nops = 0
    def raw(self, text):
        self.out.append(text)
    def comment(self, t): self.out.append('    ; ' + t)
    def _req(self, ins):
        req = 0
        for h in self.ctx:
            d = 0
            for p in reversed(h):
                n = need(p, ins)
                if n - d > req: req = n - d
                d += p.ws
                if d >= 14: break
        return req
    def __call__(self, text):
        for line in text.strip().split('\n'):
            line = line.strip()
            if not line: continue
            if line.startswith(';'):
                self.out.append('    ' + line); continue
            ins = I(line)
            r = self._req(ins)
            while r > 0:
                k = min(r, 16)
                nop = I(f's_nop {k-1}')
                self.out.append(f'    s_nop {k-1}')
                self.nops += k
                for h in self.ctx: h.append(nop)
                r -= k
            self.out.append('    ' + line)
            for h in self.ctx:
                h.append(ins)
                if len(h) > 40: del h[:20]
    def label(self, name, extra_ctx=None, fall=True):
        self.out.append(name + ':')
        c = [list(h) for h in self.ctx] if fall else []
        if extra_ctx:
            c += [list(h) for h in extra_ctx]
        self.ctx = c if c else [[]]
    def snap(self):
        return [list(h) for h in self.ctx]
    def flush(self):
        worst = 0
        for h in self.ctx:
            d = 0
            for p in reversed(h):
                w = 0
                if p.kind == 'mfma': w = p.passes + 4
                elif p.kind in ('valu', 'trans', 'perm', 'rdlane'): w = 5 if p.sw else 2
                elif p.store4: w = 2
                elif p.kind == 'salu' and 'm0' in p.sw: w = 1
                worst = max(worst, w - d)
                d += p.ws
                if d >= 14: break
        while worst > 0:
            k = min(worst, 16)
            self(f's_nop {k-1}')
            worst -= k
        self.ctx = [[]]
    def loop(self, name, body):
        save_out, save_ctx, save_nops = self.out, self.snap(), self.nops
        self.out = []
        self.label(name)
        body()
        tail = self.snap()
        self.out, self.ctx, self.nops = save_out, save_ctx, save_nops
        self.label(name, extra_ctx=tail)
        body()
    def text(self): return '\n'.join(self.out) + '\n'
```

```python
import sys, struct
sys.path.insert(0, 'gen')
from asmlib import Asm

def f32(x): return '0x%08x' % struct.unpack('<I', struct.pack('<f', x))[0]

KVP = 1056; KT = 8 * KVP; TASK = 2 * KT; SLOT = 2 * TASK
WQSZ = 16608; PST = WQSZ + 14 * 1024
PB = 163840 - 3 * PST
LDS1 = 163840
SCALE = 1.4426950408889634 * (128 ** -0.5)

def vr(b, n=4): return f'v[{b}:{b+n-1}]'

def k1(a):
    a.raw('.globl attn_kernel\n.p2align 8\n.type attn_kernel,@function\nattn_kernel:')
    a('''
    s_cmp_ge_u32 s2, 256
    s_cbranch_scc1 L1_end
    s_load_dwordx8 s[8:15], s[0:1], 0
    s_load_dwordx8 s[16:23], s[0:1], 40
    s_load_dwordx2 s[24:25], s[0:1], 96
    v_lshrrev_b32 v1, 6, v0
    v_and_b32 v0, 63, v0
    v_readfirstlane_b32 s26, v1
    s_and_b32 s3, s2, 7
    s_lshr_b32 s4, s2, 3
    s_lshr_b32 s30, s3, 2
    s_and_b32 s3, s3, 3
    s_lshl_b32 s3, s3, 2
    s_and_b32 s5, s4, 3
    s_or_b32 s31, s3, s5
    s_lshr_b32 s33, s4, 2
    s_lshl_b32 s33, s33, 1
    s_lshr_b32 s27, s26, 2
    s_lshr_b32 s28, s26, 1
    s_and_b32 s28, s28, 1
    s_and_b32 s29, s26, 1
    s_add_u32 s32, s33, s27
    v_and_b32 v2, 15, v0
    v_lshrrev_b32 v3, 4, v0
    v_mov_b32 v4, 0
    v_mov_b32 v5, 0
    v_mov_b32 v6, 0
    v_mov_b32 v7, 0
    s_waitcnt lgkmcnt(0)
    s_cmp_eq_u32 s30, 0
    s_cselect_b64 s[8:9], s[8:9], s[16:17]
    s_cselect_b64 s[10:11], s[10:11], s[18:19]
    s_cselect_b64 s[12:13], s[12:13], s[20:21]
    s_cselect_b64 s[14:15], s[14:15], s[22:23]
    s_mov_b32 s44, s24
    s_mov_b32 s45, s25
    s_mov_b32 s46, %d
    s_mov_b32 s47, 0x00020000
    s_cmp_eq_u32 s29, s27
    s_cbranch_scc0 L1_nt3
    ''' % (2 * 112 * 128 * 1024))
    c0 = a.snap()
    body(a, 4)
    a.label('L1_nt3', extra_ctx=c0, fall=False)
    body(a, 3)
    a.label('L1_end', fall=False)
    a('s_endpgm')

def body(a, NT):
    S = f'_{NT}'
    LANE, VI, VKQ, Z = 244, 245, 246, 248
    a(f'''
    v_mov_b32 v{LANE}, v0
    v_mov_b32 v{VI}, v2
    v_mov_b32 v{VKQ}, v3
    v_mov_b32 v{Z}, 0
    v_mov_b32 v{Z+1}, 0
    v_mov_b32 v{Z+2}, 0
    v_mov_b32 v{Z+3}, 0
    ''')
    FA = 128; XB = 160; VO = 192; vA = 200; vX = 201; T0 = 202; T1 = 203
    KVO = 236
    if NT == 4:
        a(f'''
        s_lshl_b32 s34, s27, 1
        s_or_b32 s34, s34, s28
        s_lshl_b32 s3, s31, 9
        s_add_u32 s36, s14, s3
        s_addc_u32 s37, s15, 0
        s_sub_u32 s38, {576*8192}, s3
        s_mov_b32 s39, 0x00020000
        ; SRD1 = x + b0*112*1152
        s_mul_i32 s3, s33, {112*1152}
        s_add_u32 s40, s8, s3
        s_addc_u32 s41, s9, 0
        s_sub_u32 s42, {16*112*1152}, s3
        s_mov_b32 s43, 0x00020000
        v_lshrrev_b32 v{T0}, 5, v{LANE}
        v_lshlrev_b32 v{T0}, 17, v{T0}
        v_and_b32 v{T1}, 31, v{LANE}
        v_lshl_add_u32 v{T0}, v{T1}, 4, v{T0}
        ; k(q) = ((2a+(q>>1))&3) | ((q&1)<<2) | ((a>>1)<<3)
        s_lshl_b32 s3, s34, 1
        s_and_b32 s3, s3, 3
        s_lshr_b32 s4, s34, 1
        s_lshl_b32 s4, s4, 3
        s_or_b32 s3, s3, s4
        s_lshl_b32 s3, s3, 13
        v_add_u32 v{T0}, s3, v{T0}
        ''')
        ioff = [0, 1024, 2080, 3104]
        for q in range(4):
            kq_ = (q >> 1) + ((q & 1) << 2)
            a(f'v_add_u32 v{VO+q}, {kq_*8192 - ioff[q]}, v{T0}')
        a(f'''
        s_lshr_b32 s3, s34, 1
        s_mul_i32 s3, s3, 112
        s_and_b32 s4, s34, 1
        s_mul_i32 s4, s4, 48
        s_add_u32 s3, s3, s4
        v_add_u32 v{T0}, s3, v{VI}
        s_movk_i32 s4, 1152
        v_mul_lo_u32 v{T0}, v{T0}, s4
        v_lshl_add_u32 v{T0}, v{VKQ}, 4, v{T0}
        ''')
        for q in range(4):
            a(f'v_add_u32 v{VO+4+q}, {q*(16*1152-1024)}, v{T0}')
        a(f'''
        s_mul_i32 s50, s34, {4096+64}
        s_lshr_b32 s3, s34, 1
        s_mul_i32 s3, s3, 7
        s_and_b32 s4, s34, 1
        s_mul_i32 s4, s4, 3
        s_add_u32 s3, s3, s4
        s_lshl_b32 s3, s3, 10
        s_add_u32 s51, s3, {WQSZ}
        s_mov_b32 s52, 0
        s_mov_b32 s53, 0
        ''')
        def pdma(stage_reg):
            a(f's_add_u32 m0, {stage_reg}, s50')
            for q in range(4):
                a(f'buffer_load_dwordx4 v{VO+q}, s[36:39], s52 offen offset:{ioff[q]} lds')
            a(f's_add_u32 m0, {stage_reg}, s51')
            for q in range(4):
                a(f'buffer_load_dwordx4 v{VO+4+q}, s[40:43], s53 offen offset:{q*1024} lds')
            a(f'''s_add_u32 s52, s52, {32*8192}
                  s_add_u32 s53, s53, 64''')
        for it in range(3):
            a(f's_mov_b32 s54, {PB + it*PST}')
            pdma('s54')
    else:
        a(f'''
        s_cmp_eq_u32 s28, 0
        s_cselect_b64 s[36:37], s[10:11], s[12:13]
        s_lshl_b32 s3, s32, 4
        s_add_u32 s3, s3, s31
        s_lshl_b32 s3, s3, 17
        s_add_u32 s36, s36, s3
        s_addc_u32 s37, s37, 0
        s_sub_u32 s36, s36, 4096
        s_subb_u32 s37, s37, 0
        s_mov_b32 s38, {131072+4096}
        s_mov_b32 s39, 0x00020000
        v_lshlrev_b32 v{T0}, 11, v{VKQ}
        v_lshl_add_u32 v{T0}, v{VI}, 4, v{T0}
        s_mul_i32 s50, s27, {TASK}
        s_mul_i32 s3, s28, {KT}
        s_add_u32 s50, s50, s3
        s_mov_b32 s52, 0
        ''')
        for q in range(4):
            a(f'v_add_u32 v{KVO+q}, {4096 - 800*q}, v{T0}')
    def kvdma(slot):
        for grp in range(2):
            if isinstance(slot, int):
                a(f's_add_u32 m0, s50, {slot + grp*4*KVP}')
            else:
                if grp == 0: a(f's_add_u32 s55, s50, {slot}\n s_mov_b32 m0, s55')
                else: a(f's_add_u32 m0, s55, {4*KVP}')
            for q in range(4):
                a(f'buffer_load_dwordx4 v{KVO+q}, s[36:39], s52 offen offset:{q*KVP} nt lds')
            a(f's_add_u32 s52, s52, {1024 if grp == 0 else 8192-1024}')
    if NT == 3:
        kvdma(0); kvdma(SLOT)
    a(f'''
    v_lshrrev_b32 v{T0}, 2, v{VI}
    v_and_b32 v{T1}, 1, v{VKQ}
    v_lshl_or_b32 v{T0}, v{T1}, 2, v{T0}
    v_mul_u32_u24 v{vA}, {2048+32}, v{T0}
    v_lshrrev_b32 v{T1}, 1, v{VKQ}
    v_lshl_add_u32 v{vA}, v{T1}, 9, v{vA}
    v_and_b32 v{T1}, 3, v{VI}
    v_lshl_add_u32 v{vA}, v{T1}, 3, v{vA}
    s_lshl_b32 s3, s28, 8
    s_add_u32 s3, s3, {PB}
    v_add_u32 v{vA}, s3, v{vA}
    ''')
    a(f'''
    s_sub_u32 s35, 4, s27
    s_mul_i32 s35, s35, s29
    s_mul_i32 s3, s27, 7
    s_add_u32 s3, s3, s35
    s_lshl_b32 s3, s3, 10
    s_add_u32 s3, s3, {PB + WQSZ}
    v_lshlrev_b32 v{vX}, 4, v{LANE}
    v_add_u32 v{vX}, s3, v{vX}
    s_mov_b32 s56, {PB}
    s_mov_b32 s57, 0
    s_mov_b32 s64, {PST}
    s_mov_b32 s65, {(-2*PST) & 0xffffffff}
    ''')
    NACC = 8 * NT * 4
    def zero_acc():
        for r in range(0, NACC, 16):
            a(f'v_mfma_f32_32x32x16_bf16 v[{r}:{r+15}], {vr(Z)}, {vr(Z)}, 0')
    zero_acc()
    def acc(j, q): return (j * NT + q) * 4
    def rdA(j):
        a(f'ds_read_b64_tr_b16 v[{FA+4*j}:{FA+4*j+1}], v{vA} offset:{32*j}')
        a(f'ds_read_b64_tr_b16 v[{FA+4*j+2}:{FA+4*j+3}], v{vA} offset:{32*j+1024}')
    def rdX(buf):
        for q in range(NT):
            a(f'ds_read_b128 {vr(XB+16*buf+4*q)}, v{vX} offset:{1024*q}')
    def mm(j, buf):
        for q in range(NT):
            a(f'v_mfma_f32_16x16x32_bf16 {vr(acc(j,q))}, {vr(FA+4*j)}, {vr(XB+16*buf+4*q)}, {vr(acc(j,q))}')
    if NT == 4: a('s_waitcnt vmcnt(16)')
    a('s_barrier')
    rdX(0)
    for j in range(4): rdA(j)
    def kstep(buf, vm, dma, nxt, kv=None):
        a('s_waitcnt lgkmcnt(6)')
        mm(0, buf)
        for j in range(4, 8): rdA(j)
        for j in range(1, 4):
            a(f's_waitcnt lgkmcnt({14-2*j})')
            mm(j, buf)
        if vm is not None: a(f's_waitcnt vmcnt({vm}) lgkmcnt(0)')
        else: a('s_waitcnt lgkmcnt(0)')
        a('s_barrier')
        if dma == 'always' and NT == 4: pdma('s56')
        if dma == 'cond' and NT == 4:
            a(f's_cmp_ge_u32 s58, 7\n s_cbranch_scc1 L1_skipdma{S}')
            c = a.snap()
            pdma('s56')
            a.label(f'L1_skipdma{S}', extra_ctx=c)
        if kv is not None and NT == 3: kvdma(kv)
        if nxt:
            a(f'''
            s_add_u32 s57, s57, 1
            s_cmp_eq_u32 s57, 3
            s_cselect_b32 s59, s65, s64
            s_cselect_b32 s57, 0, s57
            s_add_u32 s56, s56, s59
            v_add_u32 v{vA}, s59, v{vA}
            v_add_u32 v{vX}, s59, v{vX}
            ''')
            rdX(buf ^ 1)
            for j in range(4): rdA(j)
    vmP = 8 if NT == 4 else None
    a('s_mov_b32 s58, 0')
    def qbody():
        kstep(0, vmP, 'always', True)
        for j in range(4, 8): mm(j, 0)
        kstep(1, vmP, 'cond', True)
        for j in range(4, 8): mm(j, 1)
        a(f's_add_u32 s58, s58, 1\n s_cmp_lt_u32 s58, 8\n s_cbranch_scc1 L1_qloop{S}')
    a.loop(f'L1_qloop{S}', qbody)
    kstep(0, 0 if NT == 4 else None, None, True, kv=2*SLOT)
    for j in range(4, 8): mm(j, 0)
    QF = 128; SP = 192; F = 224
    vK = 240; vV = 241; L = 242 if False else None
    if NT == 4:
        Lr = [252, 253, 254, 255]; Tr = [242, 243, 247, 251]
        VHI = [SP + 8*q + 4 for q in range(4)]
        Mr = None
    else:
        Lr = [252, 253, 254]; Tr = [242, 243, 247]
        VHI = [SP + 8*q + 4 for q in range(3)] + [216 + 4]
    a(f'''
    v_and_b32 v{T0}, 7, v{VI}
    v_mul_u32_u24 v{vK}, {KVP}, v{T0}
    v_lshrrev_b32 v{T0}, 3, v{VI}
    v_lshl_add_u32 v{vK}, v{T0}, 8, v{vK}
    v_lshl_add_u32 v{vK}, v{VKQ}, 4, v{vK}
    s_mul_i32 s3, s27, {TASK}
    v_add_u32 v{vK}, s3, v{vK}
    v_and_b32 v{T0}, 1, v{VKQ}
    v_lshrrev_b32 v{T1}, 2, v{VI}
    v_lshl_add_u32 v{T0}, v{T0}, 2, v{T1}
    v_mul_u32_u24 v{vV}, {KVP}, v{T0}
    v_lshrrev_b32 v{T0}, 1, v{VKQ}
    v_lshl_add_u32 v{vV}, v{T0}, 8, v{vV}
    v_and_b32 v{T0}, 3, v{VI}
    v_lshl_add_u32 v{vV}, v{T0}, 3, v{vV}
    s_add_u32 s3, s3, {KT}
    v_add_u32 v{vV}, s3, v{vV}
    ''')
    FN = F if NT == 4 else 204
    if NT == 3:
        FN = 176
    kstep(1, None if NT == 4 else 16, None, False, kv=3*SLOT)
    def rdK(u, s, b):
        a(f'ds_read_b128 {vr(b)}, v{vK} offset:{512*u+64*s}')
    def rdV(j, b):
        a(f'ds_read_b64_tr_b16 v[{b}:{b+1}], v{vV} offset:{32*j}')
        a(f'ds_read_b64_tr_b16 v[{b+2}:{b+3}], v{vV} offset:{32*j+512}')
    FB = [224, 228, 232, 216] if NT == 3 else [224, 228, 232, 236]
    for s in range(4): rdK(0, s, FB[s])
    for j in range(4, 8): mm(j, 1)
    a(f's_mov_b32 s60, {f32(SCALE)}')
    def qf(q, s): return QF + (q * 4 + s) * 4
    for q in range(NT):
        for s in range(4):
            A_, B_ = acc(2*s, q), acc(2*s+1, q); d = qf(q, s)
            for r in range(4): a(f'v_mul_f32 v{A_+r}, s60, v{A_+r}')
            for r in range(4): a(f'v_mul_f32 v{B_+r}, s60, v{B_+r}')
            a(f'''
            v_cvt_pk_bf16_f32 v{d}, v{A_}, v{A_+1}
            v_cvt_pk_bf16_f32 v{d+1}, v{A_+2}, v{A_+3}
            v_cvt_pk_bf16_f32 v{d+2}, v{B_}, v{B_+1}
            v_cvt_pk_bf16_f32 v{d+3}, v{B_+2}, v{B_+3}
            ''')
    for q in range(NT):
        for s in range(4):
            d = qf(q, s)
            a(f'v_permlane32_swap_b32 v{d}, v{d+2}\n v_permlane32_swap_b32 v{d+1}, v{d+3}')
    for q in range(NT):
        for s in range(4):
            d = qf(q, s)
            a(f'v_permlane16_swap_b32 v{d}, v{d+2}\n v_permlane16_swap_b32 v{d+1}, v{d+3}')
    zero_acc()
    for q in range(NT): a(f'v_mov_b32 v{Lr[q]}, 0')
    a(f'''
    s_mov_b32 s58, 0
    s_mov_b32 s57, 0
    s_mov_b32 s56, 0
    s_mov_b32 s64, {SLOT}
    s_mov_b32 s65, {(-3*SLOT) & 0xffffffff}
    s_mov_b32 s61, {f32(2.0**60)}
    s_mov_b32 s62, {f32(2.0**-40)}
    ''')
    TMP = VI
    TMP2 = VKQ
    def sreg(q, u): return SP + 8*q + 4*u
    def qk(u, s, b):
        for q in range(NT):
            c = vr(sreg(q, u)) if s else '0'
            a(f'v_mfma_f32_16x16x32_bf16 {vr(sreg(q,u))}, {vr(b)}, {vr(qf(q,s))}, {c}')
    def pv(j, b):
        for q in range(NT):
            a(f'v_mfma_f32_16x16x32_bf16 {vr(acc(j,q))}, {vr(b)}, {vr(SP+8*q)}, {vr(acc(j,q))}')
    def sm_fast(q, u):
        r = sreg(q, u); p = SP + 8*q + 2*u; t = Tr[q]
        for i in range(4): a(f'v_exp_f32 v{r+i}, v{r+i}')
        if u == 0: a(f'v_add_f32 v{t}, v{r}, v{r+1}')
        else: a(f'v_add_f32 v{t}, v{t}, v{r}\n v_add_f32 v{t}, v{t}, v{r+1}')
        a(f'v_add_f32 v{t}, v{t}, v{r+2}\n v_add_f32 v{t}, v{t}, v{r+3}')
        a(f'v_cvt_pk_bf16_f32 v{p}, v{r}, v{r+1}\n v_cvt_pk_bf16_f32 v{p+1}, v{r+2}, v{r+3}')
    def tile_sync(tag):
        a(f's_waitcnt lgkmcnt(0)\n s_cmp_ge_u32 s58, 15\n s_cbranch_scc1 L1_nosync{tag}{S}')
        c = a.snap()
        if NT == 3:
            a(f'''s_cmp_lt_u32 s58, 13
                  s_cbranch_scc1 L1_w16{tag}{S}
                  s_cmp_eq_u32 s58, 13
                  s_cbranch_scc1 L1_w8{tag}{S}
                  s_waitcnt vmcnt(0)''')
            a.label(f'L1_w8{tag}{S}')
            a('s_waitcnt vmcnt(8)')
            a.label(f'L1_w16{tag}{S}')
            a('s_waitcnt vmcnt(16)')
        a('s_barrier')
        if NT == 3:
            a(f's_cmp_ge_u32 s58, 12\n s_cbranch_scc1 L1_nodma{tag}{S}')
            c2 = a.snap()
            kvdma('s56')
            a.label(f'L1_nodma{tag}{S}', extra_ctx=c2)
        a(f'''
        s_add_u32 s57, s57, 1
        s_cmp_eq_u32 s57, 4
        s_cselect_b32 s59, s65, s64
        s_cselect_b32 s57, 0, s57
        s_add_u32 s56, s56, s59
        v_add_u32 v{vK}, s59, v{vK}
        ''')
        return c
    gen_ctx = []
    def fast():
        for s in range(4):
            a(f's_waitcnt lgkmcnt(3)')
            qk(0, s, FB[s])
            rdK(1, s, FB[s])
        for s in range(4):
            a(f's_waitcnt lgkmcnt({3+s})')
            qk(1, s, FB[s])
            rdV(s, FB[s])
            if s < NT: sm_fast(s, 0)
        for q in range(NT):
            sm_fast(q, 1)
        if NT == 4: a(f'v_max3_f32 v{TMP}, v{Tr[0]}, v{Tr[1]}, v{Tr[2]}\n v_max_f32 v{TMP}, v{TMP}, v{Tr[3]}')
        else: a(f'v_max3_f32 v{TMP}, v{Tr[0]}, v{Tr[1]}, v{Tr[2]}')
        a(f'v_cmp_nlt_f32 vcc, v{TMP}, s61' if False else f'v_cmp_ngt_f32 vcc, s61, v{TMP}')
        a(f's_cbranch_vccnz L1_gen_enter{S}')
        gen_ctx.extend(a.snap())
        a(f's_cmp_lg_u32 s58, 0\n s_cbranch_scc1 L1_chk_ok{S}')
        c = a.snap()
        if NT == 4: a(f'v_min3_f32 v{TMP}, v{Tr[0]}, v{Tr[1]}, v{Tr[2]}\n v_min_f32 v{TMP}, v{TMP}, v{Tr[3]}')
        else: a(f'v_min3_f32 v{TMP}, v{Tr[0]}, v{Tr[1]}, v{Tr[2]}')
        a(f'v_cmp_nle_f32 vcc, s62, v{TMP}')
        a(f's_cbranch_vccnz L1_gen_enter{S}')
        gen_ctx.extend(a.snap())
        a.label(f'L1_chk_ok{S}', extra_ctx=c)
        a('s_waitcnt lgkmcnt(6)')
        for j in range(4): rdV(4 + j, VHI[j])
        for q in range(NT): a(f'v_add_f32 v{Lr[q]}, v{Lr[q]}, v{Tr[q]}')
        pv(0, FB[0])
        for j in range(1, 4):
            a(f's_waitcnt lgkmcnt({14-2*j})')
            pv(j, FB[j])
        c = tile_sync('f')
        for s in range(4): rdK(0, s, FB[s])
        a(f'v_add_u32 v{vV}, s59, v{vV}')
        a.label(f'L1_nosyncf{S}', extra_ctx=c)
        for j in range(4, 8): pv(j, VHI[j-4])
        a(f's_add_u32 s58, s58, 1\n s_cmp_lt_u32 s58, 16\n s_cbranch_scc1 L1_floop{S}')
    a.loop(f'L1_floop{S}', fast)
    a(f's_branch L1_epi{S}')
    epi_ctx = a.snap()
    a.label(f'L1_gen_enter{S}', extra_ctx=gen_ctx, fall=False)
    a.flush()
    Mr = [FB[3] + q for q in range(NT)]
    a('s_waitcnt lgkmcnt(0)')
    a(f's_cmp_eq_u32 s58, 0\n s_cselect_b32 s63, {f32(-3.0e38)}, 0')
    for q in range(NT): a(f'v_mov_b32 v{Mr[q]}, s63')
    def general():
        for u in range(2):
            for s in range(4):
                rdK(u, s, FB[0])
                a('s_waitcnt lgkmcnt(0)')
                qk(u, s, FB[0])
        for q in range(NT):
            r = SP + 8*q; t = Tr[q]; m = Mr[q]
            a(f'''
            v_max3_f32 v{TMP}, v{r}, v{r+1}, v{r+2}
            v_max3_f32 v{TMP}, v{TMP}, v{r+3}, v{r+4}
            v_max3_f32 v{TMP}, v{TMP}, v{r+5}, v{r+6}
            v_max_f32 v{TMP}, v{TMP}, v{r+7}
            v_mov_b32 v{TMP2}, v{TMP}
            v_permlane32_swap_b32 v{TMP}, v{TMP2}
            v_max_f32 v{TMP}, v{TMP}, v{TMP2}
            v_mov_b32 v{TMP2}, v{TMP}
            v_permlane16_swap_b32 v{TMP}, v{TMP2}
            v_max3_f32 v{TMP}, v{TMP}, v{TMP2}, v{m}
            v_sub_f32 v{TMP2}, v{m}, v{TMP}
            v_exp_f32 v{TMP2}, v{TMP2}
            v_mov_b32 v{m}, v{TMP}
            ''')
            for i in range(8): a(f'v_sub_f32 v{r+i}, v{r+i}, v{m}')
            sm_fast(q, 0); sm_fast(q, 1)
            a(f'v_fma_f32 v{Lr[q]}, v{Lr[q]}, v{TMP2}, v{t}')
            for j in range(8):
                for i in range(4): a(f'v_mul_f32 v{acc(j,q)+i}, v{acc(j,q)+i}, v{TMP2}')
        for j in range(8):
            rdV(j, FB[0])
            a('s_waitcnt lgkmcnt(0)')
            pv(j, FB[0])
        c = tile_sync('g')
        a(f'v_add_u32 v{vV}, s59, v{vV}')
        a.label(f'L1_nosyncg{S}', extra_ctx=c)
        a(f's_add_u32 s58, s58, 1\n s_cmp_lt_u32 s58, 16\n s_cbranch_scc1 L1_gloop{S}')
    a.loop(f'L1_gloop{S}', general)
    a.label(f'L1_epi{S}', extra_ctx=epi_ctx)
    for q in range(NT):
        l = Lr[q]
        a(f'''
        v_mov_b32 v{TMP}, v{l}
        v_permlane32_swap_b32 v{l}, v{TMP}
        v_add_f32 v{l}, v{l}, v{TMP}
        v_mov_b32 v{TMP}, v{l}
        v_permlane16_swap_b32 v{l}, v{TMP}
        v_add_f32 v{l}, v{l}, v{TMP}
        v_rcp_f32 v{l}, v{l}
        ''')
    a(f'''
    s_mul_i32 s3, s30, 112
    s_mul_i32 s4, s32, 7
    s_add_u32 s3, s3, s4
    s_add_u32 s3, s3, s35
    s_lshl_b32 s3, s3, 7
    s_lshl_b32 s4, s31, 1
    s_add_u32 s4, s4, s28
    s_lshl_b32 s4, s4, 2
    s_add_u32 s3, s3, s4
    s_lshl_b32 s3, s3, 10
    v_lshlrev_b32 v{TMP}, 4, v{LANE}
    ''')
    for q in range(NT):
        for s in range(4):
            A_, B_ = acc(2*s, q), acc(2*s+1, q); d = QF + (q*4+s)*4
            for r in range(4): a(f'v_mul_f32 v{A_+r}, v{A_+r}, v{Lr[q]}')
            for r in range(4): a(f'v_mul_f32 v{B_+r}, v{B_+r}, v{Lr[q]}')
            a(f'''
            v_cvt_pk_bf16_f32 v{d}, v{A_}, v{A_+1}
            v_cvt_pk_bf16_f32 v{d+1}, v{A_+2}, v{A_+3}
            v_cvt_pk_bf16_f32 v{d+2}, v{B_}, v{B_+1}
            v_cvt_pk_bf16_f32 v{d+3}, v{B_+2}, v{B_+3}
            buffer_store_dwordx4 {vr(d)}, v{TMP}, s[44:47], s3 offen offset:{1024*s}
            ''')
        a(f's_add_u32 s3, s3, {128*1024}')
    a('s_endpgm')
```

```python
import sys, struct
sys.path.insert(0, 'gen')
from asmlib import Asm
def vr(b, n=4): return f'v[{b}:{b+n-1}]'
NW = 8
WST = 4 * 1056
NST = 3
LDS2 = 131072
def k2(a):
    a.raw('.globl oproj_kernel\n.p2align 8\n.type oproj_kernel,@function\noproj_kernel:')
    a('''
    s_cmp_ge_u32 s2, 256
    s_cbranch_scc1 L2_end
    s_and_b32 s3, s2, 7
    s_lshr_b32 s4, s2, 3
    s_lshr_b32 s30, s3, 2
    s_and_b32 s3, s3, 3
    s_lshl_b32 s3, s3, 5
    s_add_u32 s3, s3, s4
    s_cmp_ge_u32 s3, 126
    s_cbranch_scc1 L2_end
    s_load_dwordx2 s[8:9], s[0:1], 32
    s_load_dwordx2 s[10:11], s[0:1], 72
    s_load_dwordx2 s[12:13], s[0:1], 80
    s_load_dwordx2 s[14:15], s[0:1], 96
    s_mul_i32 s31, s3, 57
    s_lshr_b32 s31, s31, 9
    s_mul_i32 s4, s31, 9
    s_sub_u32 s32, s3, s4
    v_lshrrev_b32 v1, 6, v0
    v_and_b32 v0, 63, v0
    v_readfirstlane_b32 s26, v1
    ''')
    ACC = 0; BF = 128; AF = 192; VO = 208; VW = 216; vA = 220; LANE = 221; VI = 222; VKQ = 223; T0 = 224; T1 = 225; Z = 228
    a(f'''
    v_mov_b32 v{LANE}, v0
    v_and_b32 v{VI}, 15, v0
    v_lshrrev_b32 v{VKQ}, 4, v0
    v_mov_b32 v{Z}, 0
    v_mov_b32 v{Z+1}, 0
    v_mov_b32 v{Z+2}, 0
    v_mov_b32 v{Z+3}, 0
    s_waitcnt lgkmcnt(0)
    s_cmp_eq_u32 s30, 0
    s_cselect_b64 s[8:9], s[8:9], s[10:11]
    s_lshl_b32 s3, s32, 7
    s_add_u32 s36, s8, s3
    s_addc_u32 s37, s9, 0
    s_sub_u32 s38, {4096*1152}, s3
    s_mov_b32 s39, 0x00020000
    s_mul_i32 s3, s30, 112
    s_lshl_b32 s4, s31, 3
    s_add_u32 s3, s3, s4
    s_lshl_b32 s3, s3, 17
    s_add_u32 s40, s14, s3
    s_addc_u32 s41, s15, 0
    s_mov_b32 s42, {8*131072}
    s_mov_b32 s43, 0x00020000
    s_mov_b32 s44, s12
    s_mov_b32 s45, s13
    s_mov_b32 s46, {1792*2304}
    s_mov_b32 s47, 0x00020000
    v_lshlrev_b32 v{T0}, 4, v{LANE}
    ''')
    for rt in range(8): a(f'v_add_u32 v{VO+rt}, {rt*131072}, v{T0}')
    a(f'''
    v_lshrrev_b32 v{T0}, 4, v{LANE}
    v_lshlrev_b32 v{T0}, 3, v{T0}
    v_bfe_u32 v{T1}, v{LANE}, 3, 1
    v_add_u32 v{T0}, v{T0}, v{T1}
    v_mul_u32_u24 v{T0}, 1152, v{T0}
    v_and_b32 v{T1}, 7, v{LANE}
    v_lshl_add_u32 v{T0}, v{T1}, 4, v{T0}
    ''')
    for p in range(4): a(f'v_add_u32 v{VW+p}, {p*(2*1152-1056)}, v{T0}')
    a(f'''
    v_and_b32 v{T0}, 1, v{VKQ}
    v_lshrrev_b32 v{T1}, 3, v{VI}
    v_lshl_add_u32 v{T0}, v{T0}, 1, v{T1}
    v_mul_u32_u24 v{vA}, 1056, v{T0}
    v_lshrrev_b32 v{T0}, 1, v{VKQ}
    v_lshl_add_u32 v{vA}, v{T0}, 8, v{vA}
    v_bfe_u32 v{T0}, v{VI}, 2, 1
    v_lshl_add_u32 v{vA}, v{T0}, 7, v{vA}
    v_and_b32 v{T0}, 3, v{VI}
    v_lshl_add_u32 v{vA}, v{T0}, 3, v{vA}
    s_mul_i32 s50, s26, {NST*WST}
    v_add_u32 v{vA}, s50, v{vA}
    s_lshl_b32 s52, s26, 10
    s_mul_i32 s53, s26, {32*1152}
    ''')
    def issue(buf, st):
        a(f's_add_u32 m0, s50, {st*WST}')
        for p in range(4):
            a(f'buffer_load_dwordx4 v{VW+p}, s[36:39], s53 offen offset:{p*1056} lds')
        for rt in range(8):
            a(f'buffer_load_dwordx4 {vr(BF+32*buf+4*rt)}, v{VO+rt}, s[40:43], s52 offen')
        a(f's_add_u32 s52, s52, {NW*1024}\n s_add_u32 s53, s53, {NW*32*1152}')
    def acc(j, rt): return ACC + (j * 8 + rt) * 4
    def compute(buf, st):
        for j in range(4):
            a(f'ds_read_b64_tr_b16 v[{AF+4*j}:{AF+4*j+1}], v{vA} offset:{st*WST+32*j}')
            a(f'ds_read_b64_tr_b16 v[{AF+4*j+2}:{AF+4*j+3}], v{vA} offset:{st*WST+32*j+512}')
        for j in range(4):
            a(f's_waitcnt lgkmcnt({6-2*j})')
            for rt in range(8):
                a(f'v_mfma_f32_16x16x32_bf16 {vr(acc(j,rt))}, {vr(AF+4*j)}, {vr(BF+32*buf+4*rt)}, {vr(acc(j,rt))}')
    issue(0, 0)
    issue(1, 1)
    for r in range(0, 128, 16):
        a(f'v_mfma_f32_32x32x16_bf16 v[{r}:{r+15}], {vr(Z)}, {vr(Z)}, 0')
    NK = 128 // NW
    a('s_mov_b32 s58, 0')
    def body():
        a('s_waitcnt vmcnt(12)')
        compute(0, 0)
        issue(0, 0)
        a('s_waitcnt vmcnt(12)')
        compute(1, 1)
        issue(1, 1)
        a(f's_add_u32 s58, s58, 1\n s_cmp_lt_u32 s58, {NK//2-1}\n s_cbranch_scc1 L2_loop')
    a.loop('L2_loop', body)
    a('s_waitcnt vmcnt(12)')
    compute(0, 0)
    a('s_waitcnt vmcnt(0)')
    compute(1, 1)
    a('s_barrier')
    WA = T0; RA = T1; OA = VO
    a(f'''
    s_lshl_b32 s3, s26, 14
    v_lshlrev_b32 v{WA}, 4, v{LANE}
    s_lshl_b32 s4, s26, 11
    v_add_u32 v{RA}, s4, v{WA}
    v_add_u32 v{WA}, s3, v{WA}
    s_lshl_b32 s3, s31, 7
    s_lshr_b32 s4, s26, 1
    s_lshl_b32 s4, s4, 4
    s_add_u32 s3, s3, s4
    v_add_u32 v{OA}, s3, v{VI}
    s_movk_i32 s5, 2304
    v_mul_lo_u32 v{OA}, v{OA}, s5
    s_mul_i32 s3, s30, 1152
    s_lshl_b32 s4, s32, 7
    s_add_u32 s3, s3, s4
    s_and_b32 s4, s26, 1
    s_lshl_b32 s4, s4, 6
    s_add_u32 s3, s3, s4
    v_lshl_add_u32 v{OA}, v{VKQ}, 4, v{OA}
    v_add_u32 v{OA}, s3, v{OA}
    s_mov_b32 s6, {64*2304}
    ''')
    R = BF
    for h in range(2):
        for rtp in range(4):
            for j in range(4):
                a(f'ds_write_b128 v{WA}, {vr(acc(j, 4*h+rtp))} offset:{(rtp*4+j)*1024}')
            if rtp == 2: a('s_waitcnt lgkmcnt(4)')
        a('s_waitcnt lgkmcnt(0)\n s_barrier')
        for w in range(8):
            if w == 4: a(f'v_add_u32 v{AF}, 0x10000, v{RA}')
            ad = RA if w < 4 else AF
            for t in range(2):
                a(f'ds_read_b128 {vr(R+(w*2+t)*4)}, v{ad} offset:{(w&3)*16384+t*1024}')
            if w == 6: a('s_waitcnt lgkmcnt(6)')
        a('s_waitcnt lgkmcnt(0)')
        if h == 0: a('s_barrier')
        for step in (4, 2, 1):
            for w in range(step):
                for t in range(2):
                    for r in range(4):
                        x = R + (w*2+t)*4 + r; y = R + ((w+step)*2+t)*4 + r
                        a(f'v_add_f32 v{x}, v{x}, v{y}')
        d = AF + 4
        a(f'''
        v_cvt_pk_bf16_f32 v{d}, v{R}, v{R+1}
        v_cvt_pk_bf16_f32 v{d+1}, v{R+2}, v{R+3}
        v_cvt_pk_bf16_f32 v{d+2}, v{R+4}, v{R+5}
        v_cvt_pk_bf16_f32 v{d+3}, v{R+6}, v{R+7}
        v_permlane32_swap_b32 v{d}, v{d+2}
        v_permlane32_swap_b32 v{d+1}, v{d+3}
        v_permlane16_swap_b32 v{d}, v{d+2}
        v_permlane16_swap_b32 v{d+1}, v{d+3}
        buffer_store_dwordx4 {vr(d)}, v{OA}, s[44:47], {'0' if h == 0 else 's6'} offen
        ''')
    a.label('L2_end')
    a('s_endpgm')
```

```python
import sys
sys.path.insert(0, 'gen')
from asmlib import Asm
import gen1, gen2
NAME = 'concat_heads__gqa_block_cached__gqa_block_cached__near_ridge'
ref = open(f'cdna_kernels/{NAME}.s.ref').read().split('\n')
hdr = [l for l in ref if l.startswith(';') and '@launch' not in l and 'Override' not in l and 'grid=ceil' not in l]
def desc(name, vgpr, sgpr=96):
    return f'''.p2align 6
.amdhsa_kernel {name}
  .amdhsa_next_free_vgpr {vgpr}
  .amdhsa_next_free_sgpr {sgpr}
  .amdhsa_accum_offset {(vgpr+3)//4*4}
  .amdhsa_group_segment_fixed_size 0
  .amdhsa_kernarg_size 104
  .amdhsa_user_sgpr_count 2
  .amdhsa_user_sgpr_kernarg_segment_ptr 1
  .amdhsa_system_sgpr_workgroup_id_x 1
.end_amdhsa_kernel
'''
a = Asm(); gen1.k1(a)
b = Asm(); gen2.k2(b)
out = '\n'.join(hdr) + '\n'
out += f'; @launch kernel=attn_kernel grid=(256,1,1) block=(512,1,1) lds={gen1.LDS1}\n'
out += f'; @launch kernel=oproj_kernel grid=(256,1,1) block=(512,1,1) lds={gen2.LDS2}\n'
out += '.amdgcn_target "amdgcn-amd-amdhsa--gfx950"\n.text\n'
out += a.text() + b.text()
out += '.section .rodata,"a"\n' + desc('attn_kernel', 256) + desc('oproj_kernel', 256)
dst = sys.argv[1] if len(sys.argv) > 1 else f'cdna_kernels/{NAME}.s'
open(dst, 'w').write(out)
print('written', dst, 'nops k1', a.nops, 'k2', b.nops, 'lines', len(out.split(chr(10))))
```
